```python
import torch

def _softmax(x, axis=-1):
    return torch.softmax(x, dim=axis)
def _gelu(x):
    return torch.nn.functional.gelu(x, approximate="tanh")
def _silu(x):
    return torch.nn.functional.silu(x)
def _sigmoid(x):
    return torch.sigmoid(x)
def _layernorm(x, axis=-1, eps=1e-5):
    m = x.mean(dim=axis, keepdim=True)
    v = x.var(dim=axis, keepdim=True, unbiased=False)
    return (x - m) / torch.sqrt(v + eps)
def _scatter_add(tgt, idx, src, axis=0):
    return tgt.clone().index_add_(axis, idx, src)
def _segment_sum(src, seg, n):
    out = torch.zeros((n,) + src.shape[1:], dtype=src.dtype)
    return out.index_add_(0, seg, src)
def _pad(x, pw):
    flat = tuple(v for pair in reversed(pw) for v in pair)
    return torch.nn.functional.pad(x, flat)

kernel_name = 'sequential_preLN__gqa_block_cached__swiglu_ffn__decode'

def setup_inputs():

    _w = (lambda a: (lambda t: t.to(torch.bfloat16) if t.is_floating_point() else t)(torch.as_tensor(a)))
    def _A_setup():
        B, Sq, D = 4, 1, 512
        Hq, Hkv, Sk, Dh = 32, 8, 4096, 128
        assert Hq % Hkv == 0, (Hq, Hkv)
        return {
            "x": _w((lambda *s: torch.randn(*s, dtype=torch.bfloat16) * 0.05)(B, Sq, D)),
            "k_cache": _w((lambda *s: torch.randn(*s, dtype=torch.bfloat16) * 3.2)(B, Hkv, Sk, Dh)),
            "v_cache": _w((lambda *s: torch.randn(*s, dtype=torch.bfloat16) * 0.4)(B, Hkv, Sk, Dh)),
            "wq": _w((lambda *s: torch.randn(*s, dtype=torch.bfloat16) * 3.2)(D, Hq * Dh) * (D ** -0.5)),
            "wo": _w((lambda *s: torch.randn(*s, dtype=torch.bfloat16) * 0.4)(Hq * Dh, D) * ((Hq * Dh) ** -0.5)),
        }
    _A_in = _A_setup()

    def _B_setup():
        B, S, D, F = 4, 1, 512, 1792
        return {
            "x": _w((lambda *s: torch.randn(*s, dtype=torch.bfloat16) * 0.05)(B, S, D)),
            "w_gate": _w((lambda *s: torch.randn(*s, dtype=torch.bfloat16) * 0.05)(D, F)),
            "w_up": _w((lambda *s: torch.randn(*s, dtype=torch.bfloat16) * 0.05)(D, F)),
            "w_down": _w((lambda *s: torch.randn(*s, dtype=torch.bfloat16) * 0.05)(F, D)),
        }
    _B_in = _B_setup()

    return {
        "A_x": _A_in["x"],
        "A_k_cache": _A_in["k_cache"],
        "A_v_cache": _A_in["v_cache"],
        "A_wq": _A_in["wq"],
        "A_wo": _A_in["wo"],
        "B_x": _B_in["x"],
        "B_w_gate": _B_in["w_gate"],
        "B_w_up": _B_in["w_up"],
        "B_w_down": _B_in["w_down"],
    }

def reference(A_x, A_k_cache, A_v_cache, A_wq, A_wo, B_x, B_w_gate, B_w_up, B_w_down):
    def _A_ref(x, k_cache, v_cache, wq, wo):
        B, Sq, D = x.shape
        Hq, Dh = 32, 128
        Hkv = k_cache.shape[1]
        rep = Hq // Hkv
        q = (lambda x, *d: x.permute(*d))((x @ wq).reshape(B, Sq, Hq, Dh), 0, 2, 1, 3)
        k = (lambda x, n, axis: torch.repeat_interleave(x, n, dim=axis))(k_cache, rep, axis=1)
        v = (lambda x, n, axis: torch.repeat_interleave(x, n, dim=axis))(v_cache, rep, axis=1)
        scores = torch.einsum("bhqd,bhkd->bhqk", q, k) * (Dh ** -0.5)
        p = _softmax(scores, axis=-1)
        o = torch.einsum("bhqk,bhkd->bhqd", p, v)
        return (lambda x, *d: x.permute(*d))(o, 0, 2, 1, 3).reshape(B, Sq, Hq * Dh) @ wo

    def _B_ref(x, w_gate, w_up, w_down):
        g = _silu(x @ w_gate)
        u = x @ w_up
        return (g * u) @ w_down

    x = A_x
    h = x + _A_ref(_layernorm(x, axis=-1), A_k_cache, A_v_cache, A_wq, A_wo)
    h2 = h + _B_ref(_layernorm(h, axis=-1), B_w_gate, B_w_up, B_w_down)
    return h2
```

```python
import re

TRANS = ("v_exp_f32", "v_log_f32", "v_rcp_f32", "v_rsq_f32", "v_sqrt_f32", "v_sin_f32", "v_cos_f32", "v_rcp_iflag_f32")

def regs_of(tok):
    tok = tok.strip()
    neg = tok.lstrip("-").replace("abs(", "").replace("|", "").rstrip(")")
    m = re.fullmatch(r"([vsa])(\d+)", neg)
    if m:
        return [(m.group(1), int(m.group(2)))]
    m = re.fullmatch(r"([vsa])\[(\d+):(\d+)\]", neg)
    if m:
        return [(m.group(1), i) for i in range(int(m.group(2)), int(m.group(3)) + 1)]
    if neg in ("vcc", "vcc_lo", "vcc_hi"):
        return [("x", "vcc")]
    if neg in ("exec", "exec_lo", "exec_hi"):
        return [("x", "exec")]
    if neg == "m0":
        return [("x", "m0")]
    return []

class Ins:
    def __init__(self, text):
        self.text = text
        t = text.split(";")[0].strip()
        self.label = t.endswith(":")
        self.directive = t.startswith(".")
        self.op = t.split()[0] if t else ""
        rest = t[len(self.op):].strip()
        ops = []
        depth = 0; cur = ""
        for ch in rest:
            if ch in "[(":
                depth += 1
            if ch in "])":
                depth -= 1
            if ch == "," and depth == 0:
                ops.append(cur.strip()); cur = ""
            else:
                cur += ch
        if cur.strip():
            ops.append(cur.strip())
        self.mods = ""
        if ops:
            parts = ops[-1].split()
            ops[-1] = parts[0]
            self.mods = " ".join(parts[1:])
        self.ops = ops
        op = self.op
        self.kind = "other"
        self.w = set(); self.r = set()
        self.A = set(); self.B = set(); self.C = set()
        self.dpp = op.endswith("_dpp") or "quad_perm" in self.mods or "row_" in self.mods
        R = lambda i: set(regs_of(ops[i])) if i < len(ops) else set()
        allr = lambda a: set().union(*[R(i) for i in range(a, len(ops))]) if len(ops) > a else set()
        if self.label or self.directive or not op:
            self.kind = "none"
        elif op.startswith("v_mfma"):
            self.kind = "mfma"
            self.w = R(0); self.A = R(1); self.B = R(2); self.C = R(3); self.r = self.A | self.B | self.C
            self.passes = 8 if "32x32x16" in op else 4
        elif op.startswith("v_"):
            self.kind = "valu"
            if op.startswith("v_permlane") and "swap" in op:
                self.w = R(0) | R(1); self.r = R(0) | R(1)
            elif op.startswith(("v_add_co", "v_sub_co", "v_addc_co", "v_subb_co", "v_subrev_co")):
                self.w = R(0) | R(1); self.r = allr(2)
            elif op.startswith("v_cmpx"):
                self.w = R(0) | {("x", "exec")}; self.r = allr(1)
            else:
                self.w = R(0); self.r = allr(1)
                if op.startswith(("v_fmac", "v_mac", "v_pk_fmac", "v_dot2c", "v_writelane")) or self.dpp:
                    self.r |= R(0)
                if op.startswith("v_cndmask") and len(ops) == 3:
                    self.r |= {("x", "vcc")}
        elif op.startswith(("buffer_", "global_", "flat_")):
            self.kind = "vmem"
            lds = " lds" in (" " + self.mods) or "_lds_" in op
            self.lds = lds
            if "load" in op and not lds:
                self.w = R(0); self.r = allr(1)
            elif "atomic" in op and "sc0" in self.mods:
                self.w = R(0); self.r = allr(0)
            else:
                self.r = allr(0)
            if lds:
                self.r |= {("x", "m0")}
            self.widestore = ("store" in op) and op.endswith(("x3", "x4"))
            if self.widestore:
                self.sdata = R(0) if op.startswith("buffer_") else R(1)
        elif op.startswith("ds_"):
            self.kind = "ds"
            if op.startswith(("ds_read", "ds_bpermute", "ds_permute", "ds_swizzle")) or "_rtn" in op:
                self.w = R(0); self.r = allr(1)
            else:
                self.r = allr(0)
        elif op.startswith(("s_load", "s_memtime", "s_memrealtime", "s_buffer_load")):
            self.kind = "smem"
            self.w = R(0); self.r = allr(1)
        elif op.startswith("s_"):
            self.kind = "salu"
            if op.startswith(("s_cmp", "s_cbranch", "s_branch", "s_waitcnt", "s_nop", "s_barrier", "s_sleep", "s_setprio", "s_endpgm", "s_bitcmp")):
                self.r = allr(0)
            else:
                self.w = R(0); self.r = allr(1)
                if "saveexec" in op:
                    self.w |= {("x", "exec")}; self.r |= {("x", "exec")}
        self.states = 1
        if op == "s_nop":
            self.states = int(ops[0], 0) + 1
        if self.kind == "none":
            self.states = 0

def vg(s):
    return {x for x in s if x[0] in "va"}
def sg(s):
    return {x for x in s if x[0] == "s" or x == ("x", "vcc")}

def need(p, c):
    n = 0
    if p.kind == "valu":
        pv = vg(p.w); ps = sg(p.w)
        if c.kind == "valu":
            if c.dpp and pv & vg(c.r): n = max(n, 2)
            if c.op.startswith(("v_readlane", "v_readfirstlane")) and pv & vg(c.r): n = max(n, 1)
            if c.op.startswith("v_permlane") and pv & vg(c.r): n = max(n, 2)
            if p.op.replace("_e32", "").replace("_e64", "") in TRANS and pv & (vg(c.r) | vg(c.w)): n = max(n, 1)
            if ps & sg(c.r):
                n = max(n, 4 if c.op.startswith(("v_readlane", "v_writelane")) else 2)
            if ("x", "exec") in p.w:
                if c.dpp: n = max(n, 5)
                if c.op.startswith(("v_readlane", "v_readfirstlane", "v_writelane", "v_permlane")): n = max(n, 4)
            if ("sdwa" in p.op or "op_sel" in p.mods) and pv & vg(c.r): n = max(n, 1)
        if c.kind == "mfma":
            if pv & vg(c.r): n = max(n, 2)
            if ("x", "exec") in p.w: n = max(n, 4)
        if c.kind == "vmem" and ps & sg(c.r): n = max(n, 5)
        if c.kind in ("vmem", "ds") and p.op.replace("_e32", "") in TRANS and pv & vg(c.r): n = max(n, 1)
        if c.kind == "salu" and ps & sg(c.r): n = max(n, 1)
    if p.kind == "mfma":
        d = p.w
        big = {4: 8, 8: 12}[p.passes]
        if c.kind == "mfma":
            if d & (c.A | c.B): n = max(n, big)
            if d & c.C and not (c.C == d and c.passes == p.passes): n = max(n, {4: 6, 8: 10}[p.passes])
            if d & c.w and not (c.C == d): n = max(n, big)
        if c.kind == "valu":
            if d & (vg(c.r) | vg(c.w)): n = max(n, big)
            if p.C & vg(c.w): n = max(n, {4: 3, 8: 7}[p.passes])
        if c.kind in ("vmem", "ds"):
            if d & (vg(c.r) | vg(c.w)): n = max(n, big)
    if p.kind == "salu":
        if ("x", "m0") in p.w and c.kind == "vmem" and getattr(c, "lds", False): n = max(n, 1)
    if p.kind == "vmem" and getattr(p, "widestore", False):
        if p.sdata & vg(c.w): n = max(n, 2)
    if p.kind == "ds" and p.op in ("ds_write_b128", "ds_write_b96"):
        pass
    return n

class Asm:
    def __init__(self):
        self.lines = []
    def __call__(self, text):
        for l in text.split("\n"):
            l = l.strip()
            if l:
                self.lines.append(l)
    def finish(self):
        out = []
        nins = 0
        for l in self.lines:
            c = Ins(l)
            if c.kind != "none":
                req = 0
                dist = 0
                for p in reversed(out):
                    if dist >= 14:
                        break
                    if p.kind != "none":
                        k = need(p, c)
                        if k - dist > req:
                            req = k - dist
                    dist += p.states
                if req > 0:
                    out.append(Ins(f"s_nop {req-1}"))
                    nins += 1
            out.append(c)
        self.n_nops = nins
        return "\n".join(("" if (i.label or i.directive) else "    ") + i.text for i in out) + "\n"
```

```python
import sys, struct, math
from asmlib import Asm
NAME = "sequential_preLN__gqa_block_cached__swiglu_ffn__decode"

HEADER = open("cdna_kernels/" + NAME + ".s.ref").read().split("; Override launch geometry")[0]

def f32(x):
    return "0x%08x" % struct.unpack("<I", struct.pack("<f", x))[0]

QBUF = 0x1000
OBUF = 0x20000
MLBUF = 0xA0000
P2BUF = 0xA8000
ACTBUF = 0xB8000
WS_USED = 0xC0000
STAMP = 0x8000000
L_FLAG = 0x0
L_Q = 0x100
L_ML = 0x800
L_XN = 0x1000
L_OB = 0x2000
L_HN = 0x3000
L_RED1 = 0x4000
L_RED2 = 0x5000
L_RED3 = 0x6000
L_STAT = 0xA000
L_WO = 0xC000
L_PART = 0x10000
L_WQ = 0x18000
L_FFN = 0x10000
LDS_BYTES = 0x1E000

DPPM = "row_mask:0xf bank_mask:0xf"
SPIN = 1 << 16

def gen(fname, stamps=False, force_cross=False, d_q=8, d_p2=6, d_act=6, opts=None):
    opts = opts or {}
    A = Asm()
    nst = [0]
    def stamp(i):
        if stamps:
            A(f"s_memrealtime s[{80+2*i}:{81+2*i}]")
    def srd(base, ptr, nbytes):
        A(f"s_mov_b32 s{base}, s{ptr}")
        A(f"s_mov_b32 s{base+1}, s{ptr+1}")
        A(f"s_mov_b32 s{base+2}, {nbytes:#x}")
        A(f"s_mov_b32 s{base+3}, 0x20000")
    def rowreduce(op, v, tmp=None):
        for k in (1, 2, 4, 8):
            A(f"{op}_dpp v{v}, v{v}, v{v} row_ror:{k} {DPPM}")
    def xrow(op, v, tmp):
        A(f"v_mov_b32 v{tmp}, v{v}")
        A(f"v_permlane16_swap_b32 v{v}, v{tmp}")
        A(f"{op} v{v}, v{v}, v{tmp}")
        A(f"v_mov_b32 v{tmp}, v{v}")
        A(f"v_permlane32_swap_b32 v{v}, v{tmp}")
        A(f"{op} v{v}, v{v}, v{tmp}")
    def bf16round(v, tmp=None):
        A(f"v_cvt_pk_bf16_f32 v{v}, v{v}, v{v}")
        A(f"v_and_b32 v{v}, s68, v{v}")
    def ln_scale(vs1, vs2_is_var, vtmp):
        pass

    if stamps:
        for i in range(10):
            A(f"s_mov_b64 s[{80+2*i}:{81+2*i}], 0")
    stamp(0)
    A(f"""
    s_cmp_ge_u32 s2, 256
    s_cbranch_scc1 L_end
    s_load_dwordx16 s[16:31], s[0:1], 0
    s_load_dwordx8 s[32:39], s[0:1], 64
    v_lshrrev_b32 v10, 6, v0
    v_and_b32 v1, 63, v0
    v_readfirstlane_b32 s3, v10
    s_and_b32 s4, s2, 7
    s_lshr_b32 s5, s2, 3
    v_lshlrev_b32 v3, 4, v1
    v_bfe_u32 v2, v1, 2, 2
    v_lshlrev_b32 v2, 8, v2
    v_lshrrev_b32 v10, 4, v1
    v_lshl_add_u32 v2, v10, 6, v2
    v_and_b32 v10, 3, v1
    v_lshl_add_u32 v2, v10, 4, v2
    v_mov_b32 v12, 0
    ds_write_b32 v12, v12
    s_lshr_b32 s13, s5, 3
    s_lshl_b32 s13, s13, 3
    s_add_u32 s13, s13, s4
    s_lshl_b32 s13, s13, 3
    s_and_b32 s14, s5, 7
    s_add_u32 s13, s13, s14
    s_lshl_b32 s13, s13, 17
    s_lshl_b32 s14, s3, 13
    s_add_u32 s13, s13, s14
    s_add_u32 s14, s13, 4096
    s_mov_b32 s65, {f32(math.log2(math.e))}
    s_mov_b32 s66, {f32(128 ** -0.5)}
    s_mov_b32 s67, 0xffffff00
    s_mov_b32 s68, 0xffff0000
    s_mov_b32 s69, {f32(-math.log2(math.e))}
    s_waitcnt lgkmcnt(0)
    s_barrier
    s_load_dword s6, s[38:39], 0
    """)
    srd(40, 18, 0x2000000)
    srd(44, 20, 0x2000000)
    srd(48, 38, 0x10000000)
    srd(60, 16, 4096)
    A("s_cmp_eq_u32 s3, 15")
    A("s_cbranch_scc1 L_helper")
    A("L_loads:")
    for t in range(8):
        A(f"buffer_load_dwordx4 v[{16+4*t}:{19+4*t}], v2, s[40:43], s{13 + t//4} offen offset:{(t%4)*1024} nt")
    for t in range(8):
        A(f"buffer_load_dwordx4 v[{48+4*t}:{51+4*t}], v3, s[44:47], s{13 + t//4} offen offset:{(t%4)*1024} nt")
    srd(52, 24, 0x400000)
    A(f"""
    v_lshrrev_b32 v11, 1, v1
    v_lshlrev_b32 v11, 10, v11
    v_and_b32 v10, 1, v1
    v_lshl_add_u32 v11, v10, 4, v11
    s_lshl_b32 s15, s4, 19
    s_lshl_b32 s7, s3, 15
    s_add_u32 s15, s15, s7
    s_lshl_b32 s7, s5, 5
    s_add_u32 s15, s15, s7
    s_lshl_b32 s7, s3, 10
    s_add_u32 s7, s7, {L_WO}
    s_mov_b32 m0, s7
    buffer_load_dwordx4 v11, s[52:55], s15 offen lds
    """)
    A(f"""
    v_lshlrev_b32 v10, 4, v10
    v_mov_b32 v12, 0xffff
    v_lshlrev_b32 v12, v10, v12
    v_and_b32 v10, 2, v1
    v_cmp_eq_u32 vcc, 0, v10
    v_cndmask_b32 v8, 0, v12, vcc
    v_cndmask_b32 v9, v12, 0, vcc
    v_mov_b32 v12, 0
    s_mov_b32 s70, 0
    """)
    A(f"""
    L_waitq:
    ds_read_b32 v10, v12
    s_waitcnt lgkmcnt(0)
    v_readfirstlane_b32 s12, v10
    s_cmp_lg_u32 s12, 0
    s_cbranch_scc1 L_gotq
    s_sleep 4
    s_add_u32 s70, s70, 1
    s_cmp_lt_u32 s70, {SPIN}
    s_cbranch_scc1 L_waitq
    L_gotq:
    ds_read_b128 v[4:7], v3 offset:{L_Q}
    """)
    stamp(1)
    def tagcalc(lbl):
        A(f"""
        s_mul_i32 s64, s6, 0x9E3779B1
        s_add_u32 s64, s64, 0x7F4A7C15
        s_lshr_b32 s7, s64, 8
        s_xor_b32 s7, s7, s64
        s_and_b32 s7, s7, 0xffffff
        s_cbranch_scc1 {lbl}
        s_mul_i32 s64, s64, 0x9E3779B1
        s_add_u32 s64, s64, 0x7F4A7C15
        {lbl}:
        """)
    tagcalc("L_tagok")
    A("""
    s_and_b32 s8, s64, 0xff
    s_bfe_u32 s9, s64, 0x80008
    s_bfe_u32 s10, s64, 0x80010
    s_lshr_b32 s11, s64, 24
    s_waitcnt lgkmcnt(0)
    """)
    for t in range(8):
        A(f"s_waitcnt vmcnt({16-t})")
        A(f"v_mfma_f32_16x16x32_bf16 v[{80+4*t}:{83+4*t}], v[{16+4*t}:{19+4*t}], v[4:7], 0")
    A("v_mov_b32 v14, 0"); A("v_mov_b32 v15, 0")
    for t in range(8):
        A(f"v_mov_b32 v{18+4*t}, 0"); A(f"v_mov_b32 v{19+4*t}, 0")
    for t in range(8):
        A(f"v_mov_b32_dpp v{112+t}, v{80+4*t} quad_perm:[0,0,0,0] {DPPM}")
    for r in (1, 2, 3):
        for t in range(8):
            A(f"v_add_f32_dpp v{112+t}, v{80+4*t+r}, v{112+t} quad_perm:[{r},{r},{r},{r}] {DPPM}")
    for t in range(0, 8, 2):
        A(f"v_cvt_pk_bf16_f32 v{80+t}, v{112+t}, v{113+t}")
    for t in range(0, 8, 2):
        A(f"v_lshlrev_b32 v{112+t}, 16, v{80+t}")
        A(f"v_and_b32 v{113+t}, s68, v{80+t}")
    for t in range(8):
        A(f"v_mul_f32 v{112+t}, s66, v{112+t}")
    for t in range(0, 8, 2):
        A(f"v_cvt_pk_bf16_f32 v{80+t}, v{112+t}, v{113+t}")
    for t in range(0, 8, 2):
        A(f"v_lshlrev_b32 v{112+t}, 16, v{80+t}")
        A(f"v_and_b32 v{113+t}, s68, v{80+t}")
    A("""
    v_max3_f32 v10, v112, v113, v114
    v_max3_f32 v11, v115, v116, v117
    v_max3_f32 v10, v10, v118, v119
    v_max_f32 v10, v10, v11
    """)
    xrow("v_max_f32", 10, 11)
    A("v_mul_f32 v13, s69, v10")
    for t in range(8):
        A(f"v_fma_f32 v{112+t}, v{112+t}, s65, v13")
    for t in range(8):
        A(f"v_exp_f32 v{112+t}, v{112+t}")
    for t in range(8):
        A(f"v_cvt_pk_bf16_f32 v{80+t}, v{112+t}, v{112+t}")
    for t in range(8):
        A(f"v_and_b32 v{16+4*t}, v8, v{80+t}")
        A(f"v_and_b32 v{17+4*t}, v9, v{80+t}")
    A("""
    v_add_f32 v112, v112, v113
    v_add_f32 v114, v114, v115
    v_add_f32 v116, v116, v117
    v_add_f32 v118, v118, v119
    v_add_f32 v112, v112, v114
    v_add_f32 v116, v116, v118
    v_add_f32 v11, v112, v116
    """)
    xrow("v_add_f32", 11, 13)
    A(f"""
    v_bfe_u32 v13, v1, 2, 2
    v_lshlrev_b32 v13, 7, v13
    s_lshl_b32 s7, s3, 3
    v_add_u32 v13, s7, v13
    s_mov_b64 exec, 0x1111
    ds_write_b64 v13, v[10:11] offset:{L_ML}
    s_mov_b64 exec, -1
    v_lshlrev_b32 v13, 5, v1
    s_lshl_b32 s7, s3, 11
    s_add_u32 s7, s7, {L_PART}
    v_add_u32 v13, s7, v13
    """)
    for t in range(8):
        A(f"s_waitcnt vmcnt({8-t})")
        c1 = "0" if t == 0 else "v[120:123]"
        c2 = "0" if t == 0 else "v[124:127]"
        A(f"v_mfma_f32_16x16x32_bf16 v[120:123], v[{16+4*t}:{19+4*t}], v[{48+4*t}:{51+4*t}], {c1}")
        A(f"v_mfma_f32_16x16x32_bf16 v[124:127], v[{14+4*t}:{17+4*t}], v[{48+4*t}:{51+4*t}], {c2}")
    A("ds_write_b128 v13, v[120:123]")
    A("ds_write_b128 v13, v[124:127] offset:16")
    A("""
    v_and_b32 v12, 3, v1
    v_lshlrev_b32 v12, 3, v12
    v_lshrrev_b32 v12, v12, s64
    v_and_b32 v12, 0xff, v12
    s_lshl_b32 s71, s4, 5
    s_add_u32 s71, s71, s5
    """)
    stamp(2)
    A("s_waitcnt lgkmcnt(0)")
    A("s_barrier")
    A("s_cmp_ge_u32 s3, 8")
    A("s_cbranch_scc1 L_wostage")
    A(f"""
    v_and_b32 v10, 15, v1
    v_lshlrev_b32 v10, 3, v10
    s_lshr_b32 s7, s3, 1
    s_lshl_b32 s15, s7, 7
    v_add_u32 v10, s15, v10
    ds_read_b64 v[10:11], v10 offset:{L_ML}
    v_lshlrev_b32 v13, 2, v0
    v_add_u32 v14, {L_PART}, v13
    """)
    for j in range(8):
        A(f"ds_read2st64_b32 v[{16+2*j}:{17+2*j}], v14 offset0:{16*j} offset1:{16*j+8}")
    A("s_waitcnt lgkmcnt(8)")
    A("v_mov_b32 v15, v10")
    rowreduce("v_max_f32", 15)
    A("""
    v_sub_f32 v10, v10, v15
    v_mul_f32 v10, s65, v10
    v_exp_f32 v10, v10
    s_waitcnt lgkmcnt(0)
    """)
    A(f"v_mul_f32_dpp v32, v10, v16 row_newbcast:0 {DPPM}")
    A(f"v_mul_f32_dpp v33, v10, v17 row_newbcast:1 {DPPM}")
    for j in range(2, 16):
        A(f"v_fmac_f32_dpp v{32+(j&1)}, v10, v{16+j} row_newbcast:{j} {DPPM}")
    A(f"""
    v_mul_f32 v11, v10, v11
    v_add_f32 v32, v32, v33
    v_and_or_b32 v32, v32, s67, v12
    s_lshl_b32 s15, s71, 11
    s_add_u32 s15, s15, {OBUF}
    s_cmp_eq_u32 s12, 2
    s_cbranch_scc1 L_ost_same
    buffer_store_dword v32, v13, s[48:51], s15 offen sc1
    s_branch L_ost_done
    L_ost_same:
    buffer_store_dword v32, v13, s[48:51], s15 offen
    L_ost_done:
    s_bitcmp1_b32 s3, 0
    s_cbranch_scc1 L_wostage
    """)
    rowreduce("v_add_f32", 11)
    A(f"""
    v_cmp_eq_u32 vcc, 0, v1
    v_cndmask_b32 v11, v11, v15, vcc
    v_and_or_b32 v11, v11, s67, v12
    v_lshlrev_b32 v13, 2, v1
    s_lshl_b32 s15, s71, 7
    s_lshl_b32 s7, s7, 4
    s_add_u32 s15, s15, s7
    s_add_u32 s15, s15, {MLBUF}
    s_mov_b64 exec, 0xf
    s_cmp_eq_u32 s12, 2
    s_cbranch_scc1 L_mst_same
    buffer_store_dword v11, v13, s[48:51], s15 offen sc1
    s_branch L_mst_done
    L_mst_same:
    buffer_store_dword v11, v13, s[48:51], s15 offen
    L_mst_done:
    s_mov_b64 exec, -1
    """)
    A("L_wostage:")
    stamp(3)
    A(f"""
    v_lshrrev_b32 v2, 4, v1
    v_lshlrev_b32 v2, 8, v2
    v_bfe_u32 v10, v1, 2, 2
    v_lshl_add_u32 v2, v10, 5, v2
    v_and_b32 v10, 3, v1
    v_lshl_add_u32 v2, v10, 3, v2
    s_lshl_b32 s7, s3, 10
    v_add_u32 v11, s7, v2
    s_waitcnt vmcnt(0)
    ds_read_b64_tr_b16 v[4:5], v11 offset:{L_WO}
    ds_read_b64_tr_b16 v[6:7], v11 offset:{L_WO+128}
    v_lshrrev_b32 v13, 5, v1
    v_and_b32 v14, 31, v1
    v_lshlrev_b32 v15, 4, v14
    v_lshl_add_u32 v15, v13, 11, v15
    v_lshl_add_u32 v10, v10, 1, v13
    v_lshlrev_b32 v10, 7, v10
    s_lshr_b32 s72, s3, 2
    s_and_b32 s73, s3, 3
    s_lshl_b32 s7, s4, 5
    s_lshl_b32 s15, s72, 3
    s_add_u32 s7, s7, s15
    s_lshl_b32 s74, s7, 11
    s_lshl_b32 s15, s73, 9
    s_add_u32 s74, s74, s15
    s_add_u32 s74, s74, {OBUF}
    s_add_u32 s75, s74, 4096
    s_add_u32 s76, s74, 8192
    s_add_u32 s77, s74, 12288
    s_lshl_b32 s78, s7, 7
    s_lshl_b32 s15, s73, 4
    s_add_u32 s78, s78, s15
    s_add_u32 s78, s78, {MLBUF}
    s_mov_b32 s70, 0
    L_poll1:
    buffer_load_dwordx4 v[32:35], v10, s[48:51], s78 offen sc1
    buffer_load_dwordx4 v[16:19], v15, s[48:51], s74 offen sc1
    buffer_load_dwordx4 v[20:23], v15, s[48:51], s75 offen sc1
    buffer_load_dwordx4 v[24:27], v15, s[48:51], s76 offen sc1
    buffer_load_dwordx4 v[28:31], v15, s[48:51], s77 offen sc1
    s_add_u32 s70, s70, 1
    s_waitcnt vmcnt(4)
    """)
    def xor4(b):
        for e in range(4):
            A(f"v_xor_b32 v{b+e}, s{8+e}, v{b+e}")
    xor4(32)
    A("v_or3_b32 v36, v32, v33, v34")
    A("v_or_b32 v36, v36, v35")
    for j in range(4):
        A(f"s_waitcnt vmcnt({3-j})")
        xor4(16 + 4 * j)
        A(f"v_or3_b32 v36, v36, v{16+4*j}, v{17+4*j}")
        A(f"v_or3_b32 v36, v36, v{18+4*j}, v{19+4*j}")
    A(f"""
    v_and_b32 v36, 0xff, v36
    v_cmp_ne_u32 vcc, 0, v36
    s_cbranch_vccz L_got1
    s_cmp_lt_u32 s70, {SPIN}
    s_cbranch_scc1 L_poll1
    L_got1:
    """)
    stamp(4)
    A(f"""
    v_max_f32_dpp v36, v32, v32 quad_perm:[1,0,3,2] {DPPM}
    v_max_f32_dpp v36, v36, v36 quad_perm:[2,3,0,1] {DPPM}
    v_mov_b32 v37, v36
    v_permlane32_swap_b32 v36, v37
    v_max_f32 v36, v36, v37
    v_sub_f32 v32, v32, v36
    v_mul_f32 v32, s65, v32
    v_exp_f32 v32, v32
    v_mul_f32 v33, v32, v33
    """)
    for e in range(4):
        A(f"v_mul_f32_dpp v{40+e}, v32, v{16+e} quad_perm:[0,0,0,0] {DPPM}")
    A(f"v_add_f32_dpp v33, v33, v33 quad_perm:[1,0,3,2] {DPPM}")
    for e in range(4):
        A(f"v_fmac_f32_dpp v{40+e}, v32, v{20+e} quad_perm:[1,1,1,1] {DPPM}")
    A(f"v_add_f32_dpp v33, v33, v33 quad_perm:[2,3,0,1] {DPPM}")
    for e in range(4):
        A(f"v_fmac_f32_dpp v{40+e}, v32, v{24+e} quad_perm:[2,2,2,2] {DPPM}")
    A("v_mov_b32 v37, v33")
    for e in range(4):
        A(f"v_fmac_f32_dpp v{40+e}, v32, v{28+e} quad_perm:[3,3,3,3] {DPPM}")
    A(f"""
    v_permlane32_swap_b32 v33, v37
    v_add_f32 v33, v33, v37
    v_rcp_f32 v33, v33
    v_permlane32_swap_b32 v40, v42
    v_permlane32_swap_b32 v41, v43
    v_add_f32 v40, v40, v42
    v_add_f32 v41, v41, v43
    v_mul_f32 v40, v40, v33
    v_mul_f32 v41, v41, v33
    v_cvt_pk_bf16_f32 v40, v40, v41
    v_lshlrev_b32 v14, 3, v14
    v_lshl_add_u32 v14, v13, 2, v14
    s_lshl_b32 s7, s3, 8
    v_add_u32 v14, s7, v14
    ds_write_b32 v14, v40 offset:{L_OB}
    """)
    A(f"""
    v_and_b32 v15, 3, v1
    v_lshlrev_b32 v15, 10, v15
    v_lshrrev_b32 v10, 4, v1
    v_lshl_add_u32 v15, v10, 4, v15
    s_lshl_b32 s7, s3, 6
    v_add_u32 v15, s7, v15
    s_lshl_b32 s7, s3, 8
    v_add_u32 v11, s7, v3
    s_waitcnt lgkmcnt(0)
    s_barrier
    ds_read_b128 v[16:19], v15 offset:{L_OB}
    """)
    A("s_cmp_ge_u32 s5, 28")
    A("s_cbranch_scc1 L_ldw_down")
    srd(52, 28, 512 * 1792 * 2)
    srd(56, 30, 512 * 1792 * 2)
    A(f"""
    v_and_b32 v10, 31, v1
    s_movk_i32 s7, 3584
    v_mul_lo_u32 v10, v10, s7
    s_mul_i32 s15, s3, {32*3584}
    s_mul_i32 s7, s4, 448
    s_add_u32 s15, s15, s7
    s_lshl_b32 s7, s5, 4
    s_add_u32 s15, s15, s7
    s_lshl_b32 s7, s3, 10
    s_add_u32 s7, s7, {L_FFN}
    s_mov_b32 m0, s7
    s_mov_b32 exec_hi, 0
    buffer_load_dwordx4 v10, s[52:55], s15 offen lds
    s_not_b64 exec, exec
    buffer_load_dwordx4 v10, s[56:59], s15 offen lds
    s_mov_b64 exec, -1
    buffer_load_dword v9, v14, s[60:63], 0 offen
    s_branch L_ldw_done
    L_ldw_down:
    """)
    srd(52, 32, 1792 * 512 * 2)
    A(f"""
    s_cmp_ge_u32 s3, 14
    s_cbranch_scc1 L_ldw_done
    v_lshrrev_b32 v10, 1, v1
    v_lshlrev_b32 v10, 10, v10
    v_and_b32 v9, 1, v1
    v_lshl_add_u32 v10, v9, 4, v10
    s_lshl_b32 s15, s3, 17
    s_lshl_b32 s7, s4, 7
    s_add_u32 s15, s15, s7
    s_sub_u32 s7, s5, 28
    s_lshl_b32 s7, s7, 5
    s_add_u32 s15, s15, s7
    s_lshl_b32 s7, s3, 12
    s_add_u32 s7, s7, {L_FFN}
    """)
    for k in range(4):
        A(f"s_mov_b32 m0, s7")
        A(f"buffer_load_dwordx4 v10, s[52:55], s15 offen lds")
        if k < 3:
            A("s_add_u32 s7, s7, 1024")
            A("s_add_u32 s15, s15, 32768")
    A("L_ldw_done:")
    A(f"""
    s_waitcnt lgkmcnt(0)
    v_mfma_f32_16x16x32_bf16 v[20:23], v[16:19], v[4:7], 0
    s_mov_b64 exec, 0xffff
    ds_write_b128 v11, v[20:23] offset:{L_RED1}
    s_mov_b64 exec, -1
    s_waitcnt lgkmcnt(0)
    s_barrier
    s_cmp_lg_u32 s3, 0
    s_cbranch_scc1 L_p2done
    """)
    def reduce16(off, n=4):
        for j in range(n):
            A(f"ds_read_b128 v[{16+4*j}:{19+4*j}], v3 offset:{off + j*1024}")
        for j in range(1, n):
            A(f"s_waitcnt lgkmcnt({min(15, n-1-j)})")
            A(f"v_pk_add_f32 v[16:17], v[16:17], v[{16+4*j}:{17+4*j}]")
            A(f"v_pk_add_f32 v[18:19], v[18:19], v[{18+4*j}:{19+4*j}]")
        A("""
        v_permlane32_swap_b32 v16, v18
        v_permlane32_swap_b32 v17, v19
        v_add_f32 v16, v16, v18
        v_add_f32 v17, v17, v19
        v_permlane16_swap_b32 v16, v17
        v_add_f32 v16, v16, v17
        """)
    reduce16(L_RED1)
    A(f"""
    v_and_or_b32 v16, v16, s67, v12
    v_lshlrev_b32 v10, 2, v1
    s_lshl_b32 s15, s71, 8
    s_add_u32 s15, s15, {P2BUF}
    buffer_store_dword v16, v10, s[48:51], s15 offen sc1
    L_p2done:
    """)
    stamp(5)
    A("s_cmp_ge_u32 s5, 28")
    A("s_cbranch_scc1 L_down")
    A(f"""
    v_and_b32 v10, 31, v1
    v_lshrrev_b32 v8, 2, v10
    v_lshlrev_b32 v8, 8, v8
    v_and_b32 v10, 3, v1
    v_lshl_add_u32 v8, v10, 4, v8
    v_lshl_add_u32 v8, v13, 13, v8
    s_lshl_b32 s74, s73, 11
    s_lshl_b32 s7, s72, 6
    s_add_u32 s74, s74, s7
    s_add_u32 s74, s74, {P2BUF}
    s_add_u32 s75, s74, 16384
    s_add_u32 s76, s74, 32768
    s_add_u32 s77, s74, 49152
    s_mov_b32 s70, 0
    """)
    A(f"""
    v_lshrrev_b32 v10, 4, v1
    v_lshlrev_b32 v10, 7, v10
    v_bfe_u32 v16, v1, 2, 2
    v_lshl_add_u32 v10, v16, 4, v10
    v_and_b32 v16, 1, v1
    v_lshl_add_u32 v10, v16, 3, v10
    v_bfe_u32 v16, v1, 1, 1
    v_lshl_add_u32 v10, v16, 9, v10
    s_lshl_b32 s7, s3, 10
    s_add_u32 s7, s7, {L_FFN}
    v_add_u32 v10, s7, v10
    s_sleep {d_p2}
    s_waitcnt vmcnt(0)
    ds_read_b64_tr_b16 v[4:5], v10
    ds_read_b64_tr_b16 v[6:7], v10 offset:64
    L_poll2:
    buffer_load_dwordx4 v[16:19], v8, s[48:51], s74 offen sc1
    buffer_load_dwordx4 v[20:23], v8, s[48:51], s75 offen sc1
    buffer_load_dwordx4 v[24:27], v8, s[48:51], s76 offen sc1
    buffer_load_dwordx4 v[28:31], v8, s[48:51], s77 offen sc1
    s_add_u32 s70, s70, 1
    v_mov_b32 v36, 0
    """)
    for j in range(4):
        A(f"s_waitcnt vmcnt({3-j})")
        xor4(16 + 4 * j)
        A(f"v_or3_b32 v36, v36, v{16+4*j}, v{17+4*j}")
        A(f"v_or3_b32 v36, v36, v{18+4*j}, v{19+4*j}")
        if j:
            A(f"v_pk_add_f32 v[16:17], v[16:17], v[{16+4*j}:{17+4*j}]")
            A(f"v_pk_add_f32 v[18:19], v[18:19], v[{18+4*j}:{19+4*j}]")
    A(f"""
    v_and_b32 v36, 0xff, v36
    v_cmp_ne_u32 vcc, 0, v36
    s_cbranch_vccz L_got2
    s_cmp_lt_u32 s70, {SPIN}
    s_cbranch_scc1 L_poll2
    L_got2:
    """)
    stamp(6)
    A(f"""
    v_permlane32_swap_b32 v16, v18
    v_permlane32_swap_b32 v17, v19
    v_add_f32 v16, v16, v18
    v_add_f32 v17, v17, v19
    v_cvt_pk_bf16_f32 v16, v16, v17
    v_lshlrev_b32 v18, 16, v9
    v_and_b32 v19, s68, v9
    v_and_b32 v17, s68, v16
    v_lshlrev_b32 v16, 16, v16
    v_add_f32 v16, v16, v18
    v_add_f32 v17, v17, v19
    v_cvt_pk_bf16_f32 v16, v16, v17
    v_and_b32 v17, s68, v16
    v_lshlrev_b32 v16, 16, v16
    v_add_f32 v20, v16, v17
    v_mul_f32 v21, v16, v16
    v_fmac_f32 v21, v17, v17
    """)
    for k in (1, 2, 4, 8):
        A(f"v_add_f32_dpp v20, v20, v20 row_ror:{k} {DPPM}")
        A(f"v_add_f32_dpp v21, v21, v21 row_ror:{k} {DPPM}")
    A(f"""
    v_permlane32_swap_b32 v20, v21
    v_add_f32 v20, v20, v21
    v_mov_b32 v21, v20
    v_permlane16_swap_b32 v20, v21
    v_add_f32 v20, v20, v21
    s_lshl_b32 s7, s3, 3
    v_lshl_add_u32 v21, v13, 2, s7
    s_mov_b32 exec_lo, 1
    s_mov_b32 exec_hi, 1
    ds_write_b32 v21, v20 offset:{L_STAT}
    s_mov_b64 exec, -1
    s_lshl_b32 s7, s72, 5
    v_mov_b32 v21, s7
    s_waitcnt lgkmcnt(0)
    s_barrier
    ds_read_b128 v[24:27], v21 offset:{L_STAT}
    ds_read_b128 v[28:31], v21 offset:{L_STAT+16}
    s_waitcnt lgkmcnt(0)
    v_pk_add_f32 v[24:25], v[24:25], v[26:27]
    v_pk_add_f32 v[28:29], v[28:29], v[30:31]
    v_pk_add_f32 v[24:25], v[24:25], v[28:29]
    v_mul_f32 v24, {f32(1/512)}, v24
    v_mul_f32 v25, {f32(1/512)}, v25
    v_fma_f32 v25, -v24, v24, v25
    v_max_f32 v25, 0, v25
    v_cvt_pk_bf16_f32 v24, v24, v25
    v_and_b32 v25, s68, v24
    v_lshlrev_b32 v24, 16, v24
    v_add_f32 v25, {f32(1e-5)}, v25
    v_sub_f32 v16, v16, v24
    v_sub_f32 v17, v17, v24
    """)
    bf16round(25)
    A("v_sqrt_f32 v25, v25")
    A("v_cvt_pk_bf16_f32 v16, v16, v17")
    bf16round(25)
    A(f"""
    v_rcp_f32 v25, v25
    v_and_b32 v17, s68, v16
    v_lshlrev_b32 v16, 16, v16
    v_mul_f32 v16, v16, v25
    v_mul_f32 v17, v17, v25
    v_cvt_pk_bf16_f32 v16, v16, v17
    ds_write_b32 v14, v16 offset:{L_HN}
    s_waitcnt lgkmcnt(0)
    s_barrier
    ds_read_b128 v[16:19], v15 offset:{L_HN}
    s_waitcnt lgkmcnt(0)
    v_mfma_f32_16x16x32_bf16 v[20:23], v[16:19], v[4:7], 0
    s_mov_b64 exec, 0xffff
    ds_write_b128 v11, v[20:23] offset:{L_RED2}
    s_mov_b64 exec, -1
    s_waitcnt lgkmcnt(0)
    s_barrier
    s_cmp_lg_u32 s3, 0
    s_cbranch_scc1 L_fin
    """)
    reduce16(L_RED2)
    bf16round(16)
    A(f"""
    v_mul_f32 v17, s69, v16
    v_exp_f32 v17, v17
    v_mov_b32_dpp v18, v16 row_ror:8 {DPPM}
    v_add_f32 v17, 1.0, v17
    v_rcp_f32 v17, v17
    v_mul_f32 v17, v16, v17
    """)
    bf16round(17)
    A(f"""
    v_mul_f32 v17, v17, v18
    v_mov_b32_dpp v18, v17 quad_perm:[1,1,3,3] {DPPM}
    v_cvt_pk_bf16_f32 v16, v17, v18
    v_mov_b32 v17, s64
    v_bfe_u32 v10, v1, 2, 1
    v_lshlrev_b32 v10, 6, v10
    v_lshrrev_b32 v18, 4, v1
    v_lshl_add_u32 v10, v18, 4, v10
    v_bfe_u32 v18, v1, 1, 1
    v_lshl_add_u32 v10, v18, 3, v10
    s_mul_i32 s15, s4, 28
    s_add_u32 s15, s15, s5
    s_lshl_b32 s15, s15, 7
    s_add_u32 s15, s15, {ACTBUF}
    s_mov_b32 exec_lo, 0x00550055
    s_mov_b32 exec_hi, 0x00550055
    buffer_store_dwordx2 v[16:17], v10, s[48:51], s15 offen sc1
    s_mov_b64 exec, -1
    """)
    stamp(7)
    A("s_branch L_fin")
    A("L_down:")
    A(f"""
    s_lshl_b32 s79, s4, 2
    s_add_u32 s79, s79, s5
    s_sub_u32 s79, s79, 28
    s_mov_b32 s70, 0
    s_cmp_eq_u32 s3, 15
    s_cbranch_scc1 L_down_bar
    s_cmp_eq_u32 s3, 14
    s_cbranch_scc1 L_down_h
    s_lshl_b32 s7, s3, 12
    s_add_u32 s7, s7, {L_FFN}
    v_add_u32 v10, s7, v2
    v_lshrrev_b32 v8, 4, v1
    v_bfe_u32 v9, v1, 2, 2
    v_lshl_add_u32 v8, v9, 2, v8
    v_lshlrev_b32 v8, 7, v8
    v_and_b32 v9, 3, v1
    v_lshl_add_u32 v8, v9, 4, v8
    s_lshl_b32 s74, s3, 11
    s_add_u32 s74, s74, {ACTBUF}
    s_lshl_b32 s7, s3, 10
    v_add_u32 v11, s7, v3
    s_waitcnt vmcnt(0)
    """)
    for k in range(4):
        A(f"ds_read_b64_tr_b16 v[{48+4*k}:{49+4*k}], v10 offset:{k*1024}")
        A(f"ds_read_b64_tr_b16 v[{50+4*k}:{51+4*k}], v10 offset:{k*1024+128}")
    A(f"""
    s_sleep {d_act}
    L_poll3:
    buffer_load_dwordx4 v[16:19], v8, s[48:51], s74 offen sc1
    buffer_load_dwordx4 v[20:23], v8, s[48:51], s74 offen offset:64 sc1
    s_add_u32 s70, s70, 1
    s_waitcnt vmcnt(0)
    v_xor_b32 v17, s64, v17
    v_xor_b32 v19, s64, v19
    v_xor_b32 v21, s64, v21
    v_xor_b32 v23, s64, v23
    v_or3_b32 v36, v17, v19, v21
    v_or_b32 v36, v36, v23
    v_mov_b32 v17, v18
    v_mov_b32 v18, v20
    v_mov_b32 v19, v22
    v_cmp_ne_u32 vcc, 0, v36
    s_cbranch_vccz L_got3
    s_sleep 1
    s_cmp_lt_u32 s70, {SPIN}
    s_cbranch_scc1 L_poll3
    L_got3:
    s_waitcnt lgkmcnt(0)
    """)
    stamp(7)
    for k in range(4):
        A(f"v_mfma_f32_16x16x32_bf16 v[{24+4*k}:{27+4*k}], v[16:19], v[{48+4*k}:{51+4*k}], 0")
    for k in range(4):
        lo = (0xffff << (16 * k)) & 0xffffffff
        hi = (0xffff << (16 * k)) >> 32
        A(f"s_mov_b32 exec_lo, {lo:#x}")
        A(f"s_mov_b32 exec_hi, {hi:#x}")
        A(f"ds_write_b128 v11, v[{24+4*k}:{27+4*k}] offset:{L_RED3}")
    A(f"""
    s_mov_b64 exec, -1
    s_waitcnt lgkmcnt(0)
    L_down_bar:
    s_barrier
    s_branch L_fin
    L_down_h:
    v_lshlrev_b32 v10, 2, v1
    v_lshrrev_b32 v8, 4, v1
    v_lshlrev_b32 v8, 10, v8
    v_and_b32 v9, 15, v1
    v_lshl_add_u32 v8, v9, 1, v8
    s_lshl_b32 s75, s79, 5
    buffer_load_ushort v9, v8, s[60:63], s75 offen
    s_lshl_b32 s74, s79, 8
    s_add_u32 s74, s74, {P2BUF}
    s_sleep {d_p2}
    L_poll4:
    s_mov_b32 s7, s74
    """)
    for j in range(8):
        A(f"buffer_load_dword v{80+j}, v10, s[48:51], s7 offen sc1")
        if j < 7:
            A("s_add_u32 s7, s7, 8192")
    A("s_add_u32 s70, s70, 1")
    A("s_waitcnt vmcnt(0)")
    for j in range(8):
        A(f"v_xor_b32 v{80+j}, v12, v{80+j}")
    A(f"""
    v_or3_b32 v36, v80, v81, v82
    v_or3_b32 v36, v36, v83, v84
    v_or3_b32 v36, v36, v85, v86
    v_or_b32 v36, v36, v87
    v_and_b32 v36, 0xff, v36
    v_cmp_ne_u32 vcc, 0, v36
    s_cbranch_vccz L_got4
    s_sleep 2
    s_cmp_lt_u32 s70, {SPIN}
    s_cbranch_scc1 L_poll4
    L_got4:
    v_add_f32 v80, v80, v82
    v_add_f32 v81, v81, v83
    v_add_f32 v80, v80, v84
    v_add_f32 v81, v81, v85
    v_add_f32 v80, v80, v86
    v_add_f32 v81, v81, v87
    v_add_f32 v80, v80, v81
    v_lshlrev_b32 v9, 16, v9
    """)
    bf16round(80)
    A("v_add_f32 v80, v80, v9")
    bf16round(80)
    srd(56, 34, 4096)
    stamp(6)
    A("s_barrier")
    reduce16(L_RED3, 14)
    bf16round(16)
    A(f"""
    v_add_f32 v16, v16, v80
    v_cvt_pk_bf16_f32 v16, v16, v16
    buffer_store_short v16, v8, s[56:59], s75 offen
    s_cmp_lg_u32 s79, 0
    s_cbranch_scc1 L_fin
    v_mov_b32 v16, s64
    v_mov_b32 v17, 0
    s_mov_b64 exec, 1
    buffer_store_dword v16, v17, s[48:51], 0 offen
    s_mov_b64 exec, -1
    s_branch L_fin
    """)
    A("L_helper:")
    A("s_setprio 3")
    srd(52, 22, 0x400000)
    A(f"""
    v_lshrrev_b32 v10, 4, v1
    v_lshlrev_b32 v10, 10, v10
    v_and_b32 v11, 15, v1
    v_lshl_add_u32 v10, v11, 4, v10
    buffer_load_dwordx4 v[16:19], v10, s[60:63], 0 offen
    buffer_load_dwordx4 v[20:23], v10, s[60:63], 0 offen offset:256
    buffer_load_dwordx4 v[24:27], v10, s[60:63], 0 offen offset:512
    buffer_load_dwordx4 v[28:31], v10, s[60:63], 0 offen offset:768
    v_lshrrev_b32 v11, 1, v1
    v_lshlrev_b32 v11, 13, v11
    v_and_b32 v12, 1, v1
    v_lshl_add_u32 v11, v12, 4, v11
    s_lshl_b32 s15, s4, 10
    s_lshl_b32 s7, s5, 5
    s_add_u32 s15, s15, s7
    s_mov_b32 s7, {L_WQ}
    """)
    for t in range(16):
        A("s_mov_b32 m0, s7")
        A("buffer_load_dwordx4 v11, s[52:55], s15 offen lds")
        if t < 15:
            A("s_add_u32 s7, s7, 1024")
            A(f"s_add_u32 s15, s15, {32*8192}")
    A("s_getreg_b32 s79, hwreg(HW_REG_XCC_ID, 0, 4)")
    A("s_waitcnt vmcnt(16)")
    for i in range(16):
        A(f"v_lshlrev_b32 v{32+2*i}, 16, v{16+i}")
        A(f"v_and_b32 v{33+2*i}, s68, v{16+i}")
    A("v_pk_add_f32 v[64:65], v[32:33], v[34:35]")
    for i in range(2, 16):
        A(f"v_pk_add_f32 v[64:65], v[64:65], v[{32+2*i}:{33+2*i}]")
    A("v_add_f32 v64, v64, v65")
    rowreduce("v_add_f32", 64)
    A(f"v_mul_f32 v64, {f32(1/512)}, v64")
    A("v_mov_b32 v66, 0"); A("v_mov_b32 v67, 0")
    for i in range(32):
        A(f"v_sub_f32 v{68+(i&1)}, v{32+i}, v64")
        A(f"v_fmac_f32 v{66+(i&1)}, v{68+(i&1)}, v{68+(i&1)}")
    A("v_add_f32 v66, v66, v67")
    rowreduce("v_add_f32", 66)
    A(f"""
    v_mul_f32 v66, {f32(1/512)}, v66
    v_cvt_pk_bf16_f32 v64, v64, v66
    v_and_b32 v66, s68, v64
    v_lshlrev_b32 v64, 16, v64
    v_add_f32 v66, {f32(1e-5)}, v66
    """)
    bf16round(66)
    A("v_sqrt_f32 v66, v66")
    bf16round(66)
    A("v_rcp_f32 v66, v66")
    for i in range(32):
        A(f"v_sub_f32 v{32+i}, v{32+i}, v64")
    for i in range(16):
        A(f"v_cvt_pk_bf16_f32 v{16+i}, v{32+2*i}, v{33+2*i}")
    for i in range(16):
        A(f"v_lshlrev_b32 v{32+2*i}, 16, v{16+i}")
        A(f"v_and_b32 v{33+2*i}, s68, v{16+i}")
    for i in range(32):
        A(f"v_mul_f32 v{32+i}, v{32+i}, v66")
    for i in range(16):
        A(f"v_cvt_pk_bf16_f32 v{16+i}, v{32+2*i}, v{33+2*i}")
    for j in range(4):
        A(f"ds_write_b128 v10, v[{16+4*j}:{19+4*j}] offset:{L_XN + 256*j}")
    A(f"""
    v_lshrrev_b32 v13, 4, v1
    v_lshlrev_b32 v12, 8, v13
    v_bfe_u32 v11, v1, 2, 2
    v_lshl_add_u32 v12, v11, 5, v12
    v_and_b32 v11, 3, v1
    v_lshl_add_u32 v12, v11, 3, v12
    v_add_u32 v12, {L_WQ}, v12
    v_lshlrev_b32 v13, 4, v13
    v_lshl_add_u32 v13, v11, 10, v13
    s_waitcnt vmcnt(0) lgkmcnt(0)
    """)
    tagcalc("L_tagok_h")
    for half in range(4):
        for t in range(4):
            tt = half * 4 + t
            A(f"ds_read_b64_tr_b16 v[{16+4*t}:{17+4*t}], v12 offset:{tt*1024}")
            A(f"ds_read_b64_tr_b16 v[{18+4*t}:{19+4*t}], v12 offset:{tt*1024+128}")
            A(f"ds_read_b128 v[{32+4*t}:{35+4*t}], v13 offset:{L_XN + tt*64}")
        for t in range(4):
            A(f"s_waitcnt lgkmcnt({9-3*t})")
            c = "0" if (half == 0 and t == 0) else "v[64:67]"
            A(f"v_mfma_f32_16x16x32_bf16 v[64:67], v[{16+4*t}:{19+4*t}], v[{32+4*t}:{35+4*t}], {c}")
    A(f"""
    v_and_b32 v10, 15, v1
    v_lshlrev_b32 v10, 11, v10
    v_lshrrev_b32 v11, 4, v1
    v_lshl_add_u32 v10, v11, 4, v10
    s_lshl_b32 s15, s4, 13
    s_lshl_b32 s7, s5, 6
    s_add_u32 s15, s15, s7
    s_add_u32 s15, s15, {QBUF}
    s_xor_b32 s7, s64, s79
    v_mov_b32 v69, s64
    v_mov_b32 v71, s7
    v_cvt_pk_bf16_f32 v68, v64, v65
    v_cvt_pk_bf16_f32 v70, v66, v67
    s_mov_b32 exec_lo, 0x000f000f
    s_mov_b32 exec_hi, 0x000f000f
    buffer_store_dwordx4 v[68:71], v10, s[48:51], s15 offen sc1
    s_mov_b64 exec, -1
    v_bfe_u32 v10, v1, 2, 2
    v_lshlrev_b32 v10, 9, v10
    v_lshl_add_u32 v10, v11, 7, v10
    v_and_b32 v11, 3, v1
    v_lshl_add_u32 v10, v11, 5, v10
    s_lshl_b32 s15, s4, 13
    s_lshr_b32 s7, s5, 3
    s_lshl_b32 s7, s7, 11
    s_add_u32 s15, s15, s7
    s_add_u32 s15, s15, {QBUF}
    s_mov_b32 s70, 0
    s_sleep {d_q}
    L_pollq:
    buffer_load_dwordx4 v[16:19], v10, s[48:51], s15 offen sc1
    buffer_load_dwordx4 v[20:23], v10, s[48:51], s15 offen offset:16 sc1
    s_add_u32 s70, s70, 1
    s_waitcnt vmcnt(0)
    v_xor_b32 v17, s64, v17
    v_xor_b32 v19, s64, v19
    v_xor_b32 v21, s64, v21
    v_xor_b32 v23, s64, v23
    v_or_b32 v24, v19, v23
    v_lshrrev_b32 v24, 4, v24
    v_or3_b32 v24, v24, v17, v21
    v_cmp_ne_u32 vcc, 0, v24
    s_cbranch_vccz L_gotq_h
    s_sleep 4
    s_cmp_lt_u32 s70, {SPIN}
    s_cbranch_scc1 L_pollq
    L_gotq_h:
    v_xor_b32 v19, s79, v19
    v_xor_b32 v23, s79, v23
    v_or_b32 v24, v19, v23
    v_cmp_ne_u32 vcc, 0, v24
    v_mov_b32 v17, v18
    v_mov_b32 v18, v20
    v_mov_b32 v19, v22
    ds_write_b128 v3, v[16:19] offset:{L_Q}
    s_cmp_eq_u64 vcc, 0
    s_cselect_b32 s7, {1 if force_cross else 2}, 1
    v_mov_b32 v24, s7
    v_mov_b32 v25, 0
    ds_write_b32 v25, v24
    s_setprio 0
    s_branch L_loads
    """)
    A("L_fin:")
    if stamps:
        stamp(8)
        A(f"""
        s_waitcnt lgkmcnt(0)
        s_lshl_b32 s7, s2, 4
        s_add_u32 s7, s7, s3
        s_lshl_b32 s7, s7, 7
        s_add_u32 s7, s7, {STAMP}
        v_mov_b32 v1, 0
        s_mov_b64 exec, 1
        """)
        for j in range(10):
            A(f"v_mov_b32 v4, s{80+2*j}")
            A(f"v_mov_b32 v5, s{81+2*j}")
            A(f"buffer_store_dwordx2 v[4:5], v1, s[48:51], s7 offen offset:{j*8}")
            A("s_nop 1")
    A("L_end:")
    A("s_endpgm")
    body = A.finish()
    txt = HEADER + f"; @launch grid=(256,1,1) block=(1024,1,1) lds={LDS_BYTES}\n"
    txt += f""".amdgcn_target "amdgcn-amd-amdhsa--gfx950"
.text
.globl {NAME}_kernel
.p2align 8
.type {NAME}_kernel,@function
{NAME}_kernel:
{body}.section .rodata,"a"
.p2align 6
.amdhsa_kernel {NAME}_kernel
  .amdhsa_next_free_vgpr 128
  .amdhsa_next_free_sgpr 102
  .amdhsa_accum_offset 128
  .amdhsa_group_segment_fixed_size 0
  .amdhsa_kernarg_size 96
  .amdhsa_user_sgpr_count 2
  .amdhsa_user_sgpr_kernarg_segment_ptr 1
  .amdhsa_system_sgpr_workgroup_id_x 1
  .amdhsa_float_denorm_mode_32 3
.end_amdhsa_kernel
"""
    open(fname, "w").write(txt)
    return A.n_nops

if __name__ == "__main__":
    print(gen("k_v1.s"))
    gen("k_v1_st.s", stamps=True)
```
